```python
import torch

def _softmax(x, axis=-1):
    return torch.softmax(x, dim=axis)

def _gelu(x):
    return torch.nn.functional.gelu(x, approximate='tanh')

def _silu(x):
    return torch.nn.functional.silu(x)

def _sigmoid(x):
    return torch.sigmoid(x)

def _layernorm(x, axis=-1, eps=1e-05):
    m = x.mean(dim=axis, keepdim=True)
    v = x.var(dim=axis, keepdim=True, unbiased=False)
    return (x - m) / torch.sqrt(v + eps)

def _scatter_add(tgt, idx, src, axis=0):
    return tgt.clone().index_add_(axis, idx, src)

def _segment_sum(src, seg, n):
    out = torch.zeros((n,) + src.shape[1:], dtype=src.dtype)
    return out.index_add_(0, seg, src)

def _pad(x, pw):
    flat = tuple((v for pair in reversed(pw) for v in pair))
    return torch.nn.functional.pad(x, flat)
kernel_name = 'adaLN_cond__softmax_full_mha__swiglu_ffn__prompt'

def setup_inputs():

    _w = lambda a: (lambda t: t.to(torch.bfloat16) if t.is_floating_point() else t)(torch.as_tensor(a))

    def _A_setup():
        B, S, D = (1, 2048, 512)
        return {'x': _w((lambda *s: torch.randn(*s, dtype=torch.bfloat16) * 0.05)(B, S, D)), 'wqkv': _w((lambda *s: torch.randn(*s, dtype=torch.bfloat16) * 0.05)(D, 3 * D)), 'wo': _w((lambda *s: torch.randn(*s, dtype=torch.bfloat16) * 0.05)(D, D))}
    _A_in = _A_setup()

    def _B_setup():
        B, S, D, F = (1, 2048, 512, 1792)
        return {'x': _w((lambda *s: torch.randn(*s, dtype=torch.bfloat16) * 0.05)(B, S, D)), 'w_gate': _w((lambda *s: torch.randn(*s, dtype=torch.bfloat16) * 0.05)(D, F)), 'w_up': _w((lambda *s: torch.randn(*s, dtype=torch.bfloat16) * 0.05)(D, F)), 'w_down': _w((lambda *s: torch.randn(*s, dtype=torch.bfloat16) * 0.05)(F, D))}
    _B_in = _B_setup()
    return {'A_x': _A_in['x'], 'A_wqkv': _A_in['wqkv'], 'A_wo': _A_in['wo'], 'B_x': _B_in['x'], 'B_w_gate': _B_in['w_gate'], 'B_w_up': _B_in['w_up'], 'B_w_down': _B_in['w_down'], 'c': _w((lambda *s: torch.randn(*s, dtype=torch.bfloat16) * 0.1)(1, 512) * 8.0), 'w_mod': _w((lambda *s: torch.randn(*s, dtype=torch.bfloat16) * 0.1)(512, 6 * 512) * 512 ** (-0.5) * 8.0)}

def reference(A_x, A_wqkv, A_wo, B_x, B_w_gate, B_w_up, B_w_down, c, w_mod):

    def _A_ref(x, wqkv, wo):
        B, S, D = x.shape
        H = 32
        Dh = D // H
        qkv = (lambda x, *d: x.permute(*d))((x @ wqkv).reshape(B, S, 3, H, Dh), 2, 0, 3, 1, 4)
        q, k, v = (qkv[0], qkv[1], qkv[2])
        scale = Dh ** (-0.5)
        scores = torch.einsum('bhqd,bhkd->bhqk', q, k) * scale
        p = _softmax(scores, axis=-1)
        o = torch.einsum('bhqk,bhkd->bhqd', p, v)
        return (lambda x, *d: x.permute(*d))(o, 0, 2, 1, 3).reshape(B, S, D) @ wo

    def _B_ref(x, w_gate, w_up, w_down):
        g = _silu(x @ w_gate)
        u = x @ w_up
        return g * u @ w_down
    x = A_x
    mod = (_silu(c) @ w_mod).reshape(c.shape[0], 6, 1, -1)
    sa, ca, ga, sb, cb, gb = (mod[:, 0].clone(), mod[:, 1].clone(), mod[:, 2].clone(), mod[:, 3].clone(), mod[:, 4].clone(), mod[:, 5].clone())
    h = _layernorm(x, axis=-1) * (1 + ca) + sa
    x = x + ga * _A_ref(h, A_wqkv, A_wo)
    h = _layernorm(x, axis=-1) * (1 + cb) + sb
    x = x + gb * _B_ref(h, B_w_gate, B_w_up, B_w_down)
    return x
```

```python
import re

TRANS = ("v_exp_f32", "v_log_f32", "v_rcp_f32", "v_rsq_f32", "v_sqrt_f32", "v_sin_f32", "v_cos_f32",
         "v_exp_f16", "v_rcp_f16", "v_rcp_iflag_f32")

_reg_re = re.compile(r"^(-|abs\()?([vas])(\d+)\)?$")
_rng_re = re.compile(r"^(-)?([vas])\[(\d+):(\d+)\]$")


def parse_operand(tok):
    tok = tok.strip()
    m = _reg_re.match(tok)
    if m:
        return [(m.group(2), int(m.group(3)))]
    m = _rng_re.match(tok)
    if m:
        return [(m.group(2), i) for i in range(int(m.group(3)), int(m.group(4)) + 1)]
    if tok == "vcc":
        return [("s", 106), ("s", 107)]
    if tok == "vcc_lo":
        return [("s", 106)]
    if tok == "vcc_hi":
        return [("s", 107)]
    if tok == "exec":
        return [("x", 0)]
    if tok == "m0":
        return [("m", 0)]
    return []


class Ins:
    __slots__ = ("text", "op", "dst", "src", "kind", "passes", "srcc", "srcab", "ws", "label", "target", "dpp", "lds_dma",
                 "store_data")

    def __init__(self, text):
        self.text = text
        self.label = None
        self.target = None
        t = text.split(";")[0].strip()
        self.dst, self.src, self.srcc, self.srcab, self.store_data = [], [], [], [], []
        self.passes = 0
        self.ws = 1
        self.dpp = False
        self.lds_dma = False
        if t.endswith(":"):
            self.label = t[:-1]
            self.op = ""
            self.kind = "label"
            self.ws = 0
            return
        if t.startswith("."):
            self.op = t
            self.kind = "directive"
            self.ws = 0
            return
        parts = t.split(None, 1)
        op = parts[0]
        self.op = op
        rest = parts[1] if len(parts) > 1 else ""
        toks = []
        cur = ""
        depth = 0
        for ch in rest:
            if ch == "[":
                depth += 1
            if ch == "]":
                depth -= 1
            if ch == "," and depth == 0:
                toks.append(cur.strip())
                cur = ""
            else:
                cur += ch
        if cur.strip():
            toks.append(cur.strip())
        mods = ""
        if toks:
            last = toks[-1].split(None, 1)
            toks[-1] = last[0]
            mods = last[1] if len(last) > 1 else ""
        ops = [parse_operand(x) for x in toks]
        base = op.replace("_e32", "").replace("_e64", "")
        if base.endswith("_dpp") or "row_" in mods or "quad_perm" in mods:
            self.dpp = True
            base = base.replace("_dpp", "")
        base = base.replace("_sdwa", "")
        if op == "s_nop":
            self.kind = "nop"
            self.ws = int(toks[0], 0) + 1
            return
        if op.startswith("s_cbranch") or op == "s_branch":
            self.kind = "branch"
            self.target = toks[0]
            return
        if op in ("s_waitcnt", "s_barrier", "s_endpgm", "s_setprio", "s_sleep"):
            self.kind = "misc"
            return
        if op.startswith("v_mfma"):
            self.kind = "mfma"
            self.passes = 8 if "32x32" in op else 4
            self.dst = ops[0]
            self.srcab = ops[1] + ops[2]
            self.srcc = ops[3]
            self.src = self.srcab + self.srcc
            return
        if op.startswith("buffer_") or op.startswith("global_"):
            self.kind = "vmem"
            is_lds = re.search(r"\blds\b", mods) is not None or "load_lds" in op
            if "store" in op or "atomic" in op:
                self.src = sum(ops, [])
                if "x4" in op or "x3" in op:
                    self.store_data = ops[0] if op.startswith("buffer_") else ops[1]
                if "atomic" in op and "sc0" in mods:
                    self.dst = ops[0]
            elif is_lds:
                self.lds_dma = True
                self.src = sum(ops, []) + [("m", 0)]
            elif op in ("buffer_inv", "buffer_wbl2"):
                pass
            else:
                self.dst = ops[0]
                self.src = sum(ops[1:], [])
            return
        if op.startswith("ds_"):
            self.kind = "ds"
            if op.startswith("ds_write") or op.startswith("ds_add") or op.startswith("ds_max") or op.startswith("ds_or"):
                self.src = sum(ops, [])
            else:
                self.dst = ops[0]
                self.src = sum(ops[1:], [])
            return
        if op.startswith("s_load") or op.startswith("s_memtime") or op.startswith("s_buffer_load") or op.startswith("s_memrealtime"):
            self.kind = "smem"
            self.dst = ops[0]
            self.src = sum(ops[1:], [])
            return
        if op.startswith("s_"):
            self.kind = "salu"
            if op.startswith("s_cmp") or op.startswith("s_bitcmp"):
                self.src = sum(ops, [])
            else:
                self.dst = ops[0]
                self.src = sum(ops[1:], [])
                if "saveexec" in op:
                    self.dst = self.dst + [("x", 0)]
                if op in ("s_addk_i32", "s_mulk_i32"):
                    self.src = self.src + ops[0]
            return
        if op.startswith("v_"):
            self.kind = "trans" if base in TRANS else "valu"
            if base.startswith("v_permlane") and "swap" in base:
                self.dst = ops[0] + ops[1]
                self.src = ops[0] + ops[1]
                self.kind = "permlane"
            elif base in ("v_add_co_u32", "v_sub_co_u32", "v_addc_co_u32", "v_subb_co_u32"):
                self.dst = ops[0] + ops[1]
                self.src = sum(ops[2:], [])
            else:
                self.dst = ops[0]
                self.src = sum(ops[1:], [])
                if base in ("v_fmac_f32", "v_pk_fmac_f16", "v_dot2c_f32_bf16") or "UNUSED_PRESERVE" in mods:
                    self.src = self.src + ops[0]
                if self.dpp:
                    self.src = self.src + ops[0]
                if base in ("v_readfirstlane_b32", "v_readlane_b32"):
                    self.kind = "readlane"
            return
        raise ValueError("unknown instruction: " + text)


VALU_KINDS = ("valu", "trans", "permlane", "readlane")


def required_ws(p, c):
    need = 0
    pd = set(p.dst)
    cs = set(c.src)
    cd = set(c.dst)
    if p.kind in VALU_KINDS:
        pv = {r for r in pd if r[0] in "va"}
        ps = {r for r in pd if r[0] == "s"}
        if pv:
            if c.kind == "mfma" and pv & cs:
                need = max(need, 2)
            if (c.kind == "permlane" or c.dpp) and pv & cs:
                need = max(need, 2)
            if c.kind == "readlane" and pv & cs:
                need = max(need, 1)
            if p.kind == "trans" and c.kind in VALU_KINDS + ("mfma",) and c.kind != "trans" and pv & cs:
                need = max(need, 1)
            if p.kind == "trans" and c.kind == "trans" and pv & cs:
                need = max(need, 1)
        if ps:
            if c.kind in VALU_KINDS and ps & cs:
                need = max(need, 4 if c.kind == "readlane" else 2)
            if c.kind == "vmem" and ps & cs:
                need = max(need, 5)
            if c.kind in ("salu", "smem") and ps & cs:
                need = max(need, 1)
    if p.kind == "mfma":
        big = 12 if p.passes == 8 else 8
        if c.kind == "mfma":
            if pd & set(c.srcab):
                need = max(need, big)
            if pd & set(c.srcc):
                if not (list(c.srcc) == list(p.dst) and c.passes == p.passes):
                    need = max(need, big - 2)
            if pd & cd and not (list(c.srcc) == list(p.dst)):
                need = max(need, big - 2)
        elif c.kind in VALU_KINDS + ("vmem", "ds"):
            if pd & (cs | cd):
                need = max(need, big)
        if c.kind in VALU_KINDS and set(p.srcc) & cd:
            need = max(need, 7 if p.passes == 8 else 3)
    if p.kind == "salu" and ("m", 0) in pd and c.lds_dma:
        need = max(need, 1)
    if p.store_data and set(p.store_data) & cd:
        need = max(need, 2)
    return need


class Asm:
    def __init__(self):
        self.ins = []
        self.vm = []
        self.lg = []

    def __call__(self, text):
        for line in text.strip().split("\n"):
            line = line.strip()
            if not line or line.startswith(";"):
                continue
            self.ins.append(Ins(line))

    def label(self, name):
        self.ins.append(Ins(name + ":"))

    def vmem(self, text, tag=None):
        self(text)
        self.vm.append(tag)

    def lds(self, text, tag=None):
        self(text)
        self.lg.append(tag)

    def _count_after(self, lst, tag):
        idx = [i for i, t in enumerate(lst) if t == tag or (isinstance(tag, (list, tuple, set)) and t in tag)]
        assert idx, f"tag {tag} never issued"
        return len(lst) - 1 - max(idx)

    def wait(self, vm=None, lg=None):
        parts = []
        if vm is not None:
            n = 0 if vm == "all" else self._count_after(self.vm, vm)
            if n <= 63:
                parts.append(f"vmcnt({n})")
            else:
                parts.append("vmcnt(63)")
        if lg is not None:
            n = 0 if lg == "all" else self._count_after(self.lg, lg)
            parts.append(f"lgkmcnt({min(n, 15)})")
        self("s_waitcnt " + " ".join(parts))

    def finalize(self, window=24):
        out = []
        for c in self.ins:
            if c.kind in ("label", "directive"):
                out.append(c)
                continue
            need = 0
            dist = 0
            for p in reversed(out):
                if p.kind in ("label", "directive"):
                    continue
                r = required_ws(p, c)
                if r > dist:
                    need = max(need, r - dist)
                dist += p.ws
                if dist > window:
                    break
            while need > 0:
                k = min(need, 16)
                out.append(Ins(f"s_nop {k - 1}"))
                need -= k
            out.append(c)
        labels = {x.label: i for i, x in enumerate(out) if x.kind == "label"}
        for j, b in enumerate(out):
            if b.kind != "branch" or b.target not in labels:
                continue
            pre = [x for x in out[max(0, j - 40):j + 1] if x.kind not in ("label", "directive")]
            post = [x for x in out[labels[b.target]:labels[b.target] + 40] if x.kind not in ("label", "directive")]
            dpost = 0
            for c in post:
                dist = dpost
                for p in reversed(pre):
                    r = required_ws(p, c)
                    if r > dist:
                        raise RuntimeError(f"hazard across branch to {b.target}: '{p.text}' -> '{c.text}' need {r} have {dist}")
                    dist += p.ws
                    if dist > window:
                        break
                dpost += c.ws
                if dpost > window:
                    break
        self.ins = out

    def text(self):
        return "\n".join((x.text if x.kind == "label" else "  " + x.text) for x in self.ins) + "\n"


def interleave(main, fill, lead=0):
    out = []
    fill = list(fill)
    out += fill[:lead]
    fill = fill[lead:]
    n = len(main)
    k = 0
    for i, m in enumerate(main):
        out.append(m)
        tgt = (len(fill) * (i + 1) + n - 1) // n
        while k < tgt:
            out.append(fill[k])
            k += 1
    return out
```

```python
import sys, os
sys.path.insert(0, os.path.dirname(os.path.abspath(__file__)))
from asmlib import Asm, interleave

NAME = "adaLN_cond__softmax_full_mha__swiglu_ffn__prompt"

KA_X, KA_WQKV, KA_WO, KA_BX, KA_WG, KA_WU, KA_WD, KA_C, KA_WMOD, KA_OUT, KA_DBG, KA_WS = [8 * i for i in range(12)]

WS_MOD = 0x0
WS_KMAX = 0x4000
WS_STAT = 0x10000
WS_XH = 0x100000
WS_Q = 0x300000
WS_K = 0x500000
WS_V = 0x700000
WS_O = 0x900000
WS_X1 = 0xB00000
WS_ACT = 0xD00000
WS_SIZE = 0x1400000

LOG2E = 1.4426950408889634
import struct


def f2u(x):
    return struct.unpack("<I", struct.pack("<f", x))[0]


def hexf(x):
    return f"0x{f2u(x):08x}"


def srd(a, d, p, size):
    a(f"s_mov_b32 s{d}, s{p}")
    a(f"s_mov_b32 s{d+1}, s{p+1}")
    a(f"s_mov_b32 s{d+2}, {size:#x}")
    a(f"s_mov_b32 s{d+3}, 0x20000")


def vr(b, n):
    return f"v[{b}:{b+n-1}]"


def ar(b, n):
    return f"a[{b}:{b+n-1}]"


def run_list(a, lst):
    for x in lst:
        if callable(x):
            x()
        else:
            a(x)


def head(a, nwg, end):
    a(f"s_cmp_ge_u32 s2, {nwg}")
    a(f"s_cbranch_scc1 {end}")


def wave_id(a, sdst, vtmp):
    a(f"v_lshrrev_b32 v{vtmp}, 6, v0")
    a(f"v_readfirstlane_b32 s{sdst}, v{vtmp}")


def k1():
    a = Asm()
    END = "K1_END"
    head(a, 256, END)
    a(f"s_load_dwordx2 s[4:5], s[0:1], {KA_X}")
    a(f"s_load_dwordx2 s[6:7], s[0:1], {KA_C}")
    a(f"s_load_dwordx2 s[8:9], s[0:1], {KA_WMOD}")
    a(f"s_load_dwordx2 s[10:11], s[0:1], {KA_WS}")
    wave_id(a, 30, 1)
    a("v_and_b32 v2, 63, v0")
    a("s_mov_b32 s31, 0xffff0000")
    a("s_waitcnt lgkmcnt(0)")
    srd(a, 12, 4, 2048 * 512 * 2)
    srd(a, 16, 6, 512 * 2)
    srd(a, 20, 8, 512 * 3072 * 2)
    srd(a, 24, 10, WS_SIZE)
    a("s_cmp_ge_u32 s2, 192")
    a("s_cbranch_scc1 K1_LN")
    a("s_and_b32 s3, s2, 7")
    a("s_mul_i32 s3, s3, 24")
    a("s_lshr_b32 s28, s2, 3")
    a("s_add_u32 s3, s3, s28")
    a("s_lshl_b32 s28, s3, 5")
    a("v_and_b32 v3, 1, v0")
    a("v_lshrrev_b32 v4, 1, v0")
    a("v_mul_u32_u24 v5, 6144, v4")
    a("v_lshl_add_u32 v5, v3, 4, v5")
    a("v_add_u32 v5, s28, v5")
    a("v_lshlrev_b32 v6, 1, v4")
    for i in range(4):
        a.vmem(f"buffer_load_ushort v{24+i}, v6, s[16:19], 0 offen offset:{256*i}", "c")
    for i in range(4):
        a(f"s_mov_b32 s29, {i*128*6144}")
        a.vmem(f"buffer_load_dwordx4 {vr(8+4*i,4)}, v5, s[20:23], s29 offen", f"w{i}")
    a.wait(vm="c")
    for i in range(4):
        a(f"v_lshlrev_b32 v{24+i}, 16, v{24+i}")
    for i in range(4):
        a(f"v_mul_f32 v{28+i}, {hexf(-LOG2E)}, v{24+i}")
    for i in range(4):
        a(f"v_exp_f32 v{28+i}, v{28+i}")
    for i in range(4):
        a(f"v_add_f32 v{28+i}, 1.0, v{28+i}")
    for i in range(4):
        a(f"v_rcp_f32 v{28+i}, v{28+i}")
    for i in range(4):
        a(f"v_mul_f32 v{28+i}, v{24+i}, v{28+i}")
    for i in range(4):
        a(f"v_cvt_pk_bf16_f32 v{28+i}, v{28+i}, v{28+i}")
    for i in range(4):
        a(f"v_lshlrev_b32 v{28+i}, 16, v{28+i}")
    for i in range(4):
        a.wait(vm=f"w{i}")
        for d in range(4):
            a(f"v_lshlrev_b32 v40, 16, v{8+4*i+d}")
            a(f"v_and_b32 v41, s31, v{8+4*i+d}")
            op = "v_mul_f32" if i == 0 else "v_fmac_f32"
            a(f"{op} v{32+2*d}, v{28+i}, v40")
            a(f"{op} v{33+2*d}, v{28+i}, v41")
    for p in range(4):
        a(f"v_permlane32_swap_b32 v{32+2*p}, v{33+2*p}")
    for p in range(4):
        a(f"v_add_f32 v{40+p}, v{32+2*p}, v{33+2*p}")
    for p in range(2):
        a(f"v_permlane16_swap_b32 v{40+2*p}, v{41+2*p}")
    for p in range(2):
        a(f"v_add_f32 v{44+p}, v{40+2*p}, v{41+2*p}")
    for r in (8, 4, 2):
        for p in range(2):
            a(f"v_add_f32_dpp v{44+p}, v{44+p}, v{44+p} row_ror:{r} row_mask:0xf bank_mask:0xf")
    a("v_lshrrev_b32 v46, 5, v2")
    a("v_bfe_u32 v47, v2, 4, 1")
    a("v_lshl_add_u32 v46, v47, 1, v46")
    a("v_lshl_add_u32 v46, v3, 3, v46")
    a("s_lshl_b32 s29, s30, 4")
    a("v_add_u32 v46, s29, v46")
    a("v_lshlrev_b32 v46, 2, v46")
    a("ds_write_b32 v46, v44")
    a("ds_write_b32 v46, v45 offset:16")
    a("s_waitcnt lgkmcnt(0)")
    a("s_barrier")
    a("v_cmp_gt_u32 vcc, 16, v0")
    a("s_and_saveexec_b64 s[32:33], vcc")
    a(f"s_cbranch_execz {END}")
    a("v_lshlrev_b32 v46, 2, v0")
    for w in range(4):
        a(f"ds_read_b32 v{48+w}, v46 offset:{64*w}")
    a("s_lshl_b32 s29, s3, 6")
    a("s_waitcnt lgkmcnt(0)")
    a("v_add_f32 v48, v48, v49")
    a("v_add_f32 v50, v50, v51")
    a("v_add_f32 v48, v48, v50")
    a(f"buffer_store_dword v48, v46, s[24:27], s29 offen offset:{WS_MOD}")
    a("s_endpgm")
    a.label("K1_LN")
    a("s_sub_u32 s3, s2, 192")
    a("v_and_b32 v3, 31, v2")
    a("v_lshrrev_b32 v4, 5, v2")
    a("s_lshl_b32 s28, s3, 15")
    a("s_lshl_b32 s29, s30, 8")
    a("s_add_u32 s28, s28, s29")
    a("v_lshlrev_b32 v5, 10, v3")
    a("v_lshl_add_u32 v5, v4, 4, v5")
    for kb in range(8):
        a.vmem(f"buffer_load_dwordx4 {vr(8+4*kb,4)}, v5, s[12:15], s28 offen offset:{32*kb}", f"x{kb}")
    X = 64
    for kb in range(8):
        a.wait(vm=f"x{kb}")
        for d in range(4):
            a(f"v_lshlrev_b32 v{X+8*kb+2*d}, 16, v{8+4*kb+d}")
            a(f"v_and_b32 v{X+8*kb+2*d+1}, s31, v{8+4*kb+d}")
    for c in range(4):
        a(f"v_add_f32 v{40+c}, v{X+c}, v{X+4+c}")
    for i in range(8, 64):
        a(f"v_add_f32 v{40+i%4}, v{40+i%4}, v{X+i}")
    a("v_add_f32 v40, v40, v41")
    a("v_add_f32 v42, v42, v43")
    a("v_add_f32 v40, v40, v42")
    a("v_lshlrev_b32 v6, 2, v0")
    a("v_lshlrev_b32 v7, 2, v3")
    a("ds_write_b32 v6, v40")
    a("s_waitcnt lgkmcnt(0)")
    a("s_barrier")
    for j in range(8):
        a(f"ds_read_b32 v{44+j}, v7 offset:{128*j}")
    a("s_waitcnt lgkmcnt(0)")
    for j in range(1, 8):
        a(f"v_add_f32 v44, v44, v{44+j}")
    a(f"v_mul_f32 v44, {hexf(1.0/512)}, v44")
    for i in range(64):
        a(f"v_sub_f32 v{X+i}, v{X+i}, v44")
    for c in range(4):
        a(f"v_mul_f32 v{40+c}, v{X+c}, v{X+c}")
    for i in range(4, 64):
        a(f"v_fmac_f32 v{40+i%4}, v{X+i}, v{X+i}")
    a("v_add_f32 v40, v40, v41")
    a("v_add_f32 v42, v42, v43")
    a("v_add_f32 v40, v40, v42")
    a("ds_write_b32 v6, v40 offset:1024")
    a("s_waitcnt lgkmcnt(0)")
    a("s_barrier")
    for j in range(8):
        a(f"ds_read_b32 v{44+j}, v7 offset:{1024+128*j}")
    a("s_waitcnt lgkmcnt(0)")
    for j in range(1, 8):
        a(f"v_add_f32 v44, v44, v{44+j}")
    a(f"v_mov_b32 v45, {hexf(1e-5)}")
    a(f"v_fmac_f32 v45, {hexf(1.0/512)}, v44")
    a("v_rsq_f32 v45, v45")
    a("s_lshl_b32 s28, s3, 15")
    a("s_lshl_b32 s29, s30, 13")
    a("s_add_u32 s28, s28, s29")
    a(f"s_add_u32 s28, s28, {WS_XH:#x}")
    a("s_add_u32 s29, s28, 4096")
    a("v_lshlrev_b32 v5, 4, v2")
    for kb in range(8):
        for i in range(8):
            a(f"v_mul_f32 v{X+8*kb+i}, v{X+8*kb+i}, v45")
        for d in range(4):
            a(f"v_cvt_pk_bf16_f32 v{8+4*kb+d}, v{X+8*kb+2*d}, v{X+8*kb+2*d+1}")
        a(f"buffer_store_dwordx4 {vr(8+4*kb,4)}, v5, s[24:27], s{28 + kb//4} offen offset:{1024*(kb%4)}")
    a.label(END)
    a("s_endpgm")
    return a, dict(vgpr=128, accum=128, lds=2048, block=256, grid=256)


def t1(kind):
    a = Asm()
    P = "K2" if kind == "qkv" else "K5"
    END = P + "_END"
    NT = 3 if kind == "qkv" else 7
    R = 8 if kind == "qkv" else 5
    STAGE = 64 * 192 if kind == "qkv" else 28928
    UPOFF = 14464
    PITCH = 192 if kind == "qkv" else 224
    NDMA = 3 if kind == "qkv" else 7
    MODL = R * STAGE
    LDS = MODL + 4096
    SLOTS_PER_BASE = 4 if kind == "qkv" else 2
    NBASE = (R + SLOTS_PER_BASE - 1) // SLOTS_PER_BASE
    ROWB = 3072 if kind == "qkv" else 3584

    V_DMA = 4
    V_TR = 11
    V_MOD = 14
    V_ACT = 15
    V_RSTD, V_NMR = 16, 17
    V_T0, V_T1 = 18, 19
    V_H = 20
    V_ST = 28
    V_WF = 60
    V_RAW = 128
    S_W = 30
    head(a, 256, END)
    if kind == "qkv":
        a(f"s_load_dwordx2 s[4:5], s[0:1], {KA_WQKV}")
    else:
        a(f"s_load_dwordx4 s[4:7], s[0:1], {KA_WG}")
    a(f"s_load_dwordx2 s[10:11], s[0:1], {KA_WS}")
    wave_id(a, S_W, 1)
    a("v_and_b32 v1, 63, v0")
    a("s_mov_b32 s31, 0xffff0000")
    a("s_and_b32 s3, s2, 7")
    a("s_lshr_b32 s28, s2, 3")
    if kind == "qkv":
        a("s_and_b32 s29, s28, 1")
        a("s_lshl_b32 s32, s3, 1")
        a("s_add_u32 s32, s32, s29")
        a("s_lshr_b32 s33, s28, 1")
    else:
        a("s_and_b32 s29, s3, 1")
        a("s_lshl_b32 s33, s29, 3")
        a("s_lshr_b32 s29, s28, 2")
        a("s_add_u32 s33, s33, s29")
        a("s_lshr_b32 s29, s3, 1")
        a("s_lshl_b32 s32, s29, 2")
        a("s_and_b32 s29, s28, 3")
        a("s_add_u32 s32, s32, s29")
    a("s_lshl_b32 s34, s33, 2")
    a(f"s_add_u32 s34, s34, s{S_W}")
    CH = 12 if kind == "qkv" else 14
    magic = (65536 + CH - 1) // CH
    for s_ in range(448):
        assert (s_ * magic) >> 16 == s_ // CH
    for q in range(NDMA):
        a(f"v_add_u32 v2, {64*q}, v1")
        a(f"v_mul_u32_u24 v3, {magic}, v2")
        a("v_lshrrev_b32 v3, 16, v3")
        a(f"v_mul_u32_u24 v{V_T0}, {CH}, v3")
        a(f"v_sub_u32 v2, v2, v{V_T0}")
        a(f"v_mul_u32_u24 v3, {ROWB}, v3")
        if kind == "qkv":
            a(f"v_lshrrev_b32 v{V_T0}, 2, v2")
            a("v_and_b32 v2, 3, v2")
            a(f"v_lshl_add_u32 v3, v{V_T0}, 10, v3")
        a("v_lshl_add_u32 v3, v2, 4, v3")
        ioff = 1024 * (q % 4)
        if ioff:
            a(f"v_subrev_u32 v{V_DMA+q}, {ioff}, v3")
        else:
            a(f"v_mov_b32 v{V_DMA+q}, v3")
    if kind == "qkv":
        a(f"s_mul_i32 s35, s{S_W}, {16*ROWB}")
        a("s_lshl_b32 s29, s32, 6")
        a("s_add_u32 s35, s35, s29")
        a(f"s_mul_i32 s36, s{S_W}, {16*PITCH}")
    else:
        a(f"s_and_b32 s29, s{S_W}, 1")
        a(f"s_mul_i32 s35, s29, {32*ROWB}")
        a(f"s_mul_i32 s36, s29, {32*PITCH}")
        a("s_mul_i32 s29, s32, 224")
        a("s_add_u32 s35, s35, s29")
        a(f"s_lshr_b32 s29, s{S_W}, 1")
        a(f"s_mul_i32 s29, s29, {UPOFF}")
        a("s_add_u32 s36, s36, s29")
    a("v_bfe_u32 v2, v1, 2, 2")
    a("v_lshrrev_b32 v3, 5, v1")
    a("v_lshl_add_u32 v2, v3, 3, v2")
    a(f"v_mul_u32_u24 v2, {PITCH}, v2")
    a("v_and_b32 v3, 1, v1")
    a("v_lshl_add_u32 v2, v3, 4, v2")
    a("v_bfe_u32 v3, v1, 1, 1")
    a("v_lshl_add_u32 v2, v3, 3, v2")
    a("v_bfe_u32 v3, v1, 4, 1")
    if kind == "qkv":
        a("v_lshl_add_u32 v2, v3, 5, v2")
    else:
        a(f"v_mul_u32_u24 v3, {UPOFF}, v3")
        a("v_add_u32 v2, v2, v3")
    for b in range(NBASE):
        a(f"v_add_u32 v{V_TR+b}, {b*SLOTS_PER_BASE*STAGE}, v2")
    a("v_lshrrev_b32 v3, 5, v1")
    a(f"v_lshlrev_b32 v{V_MOD}, 6, v3")
    a(f"v_add_u32 v{V_MOD}, {MODL}, v{V_MOD}")
    a(f"v_lshlrev_b32 v{V_ACT}, 4, v1")
    a("s_waitcnt lgkmcnt(0)")
    if kind == "qkv":
        a("s_mov_b32 s12, s4")
        a("s_mov_b32 s13, s5")
        a(f"s_mov_b32 s14, {512*1536*2}")
    else:
        a(f"s_cmp_ge_u32 s{S_W}, 2")
        a("s_cselect_b32 s12, s6, s4")
        a("s_cselect_b32 s13, s7, s5")
        a(f"s_mov_b32 s14, {512*1792*2}")
    a("s_mov_b32 s15, 0x20000")
    srd(a, 24, 10, WS_SIZE)
    sh_off = WS_MOD + (0 if kind == "qkv" else 3 * 2048)
    sc_off = WS_MOD + (2048 if kind == "qkv" else 4 * 2048)
    a("v_lshlrev_b32 v2, 3, v0")
    a(f"s_mov_b32 s29, {sc_off}")
    a.vmem(f"buffer_load_dwordx2 {vr(V_ST,2)}, v2, s[24:27], s29 offen", "mod")
    a(f"s_mov_b32 s29, {sh_off}")
    a.vmem(f"buffer_load_dwordx2 {vr(V_ST+2,2)}, v2, s[24:27], s29 offen", "mod")
    if kind == "gu":
        a("v_and_b32 v3, 31, v1")
        a("v_lshlrev_b32 v3, 7, v3")
        a(f"v_lshrrev_b32 v{V_T0}, 5, v1")
        a(f"v_lshl_add_u32 v3, v{V_T0}, 6, v3")
        a("s_lshl_b32 s29, s34, 12")
        a(f"s_add_u32 s29, s29, {WS_STAT:#x}")
        for j in range(4):
            a.vmem(f"buffer_load_dwordx4 {vr(V_ST+16+4*j,4)}, v3, s[24:27], s29 offen offset:{16*j}", "stat")
    act_base = WS_XH if kind == "qkv" else WS_X1
    a("s_lshl_b32 s37, s34, 15")
    a(f"s_add_u32 s37, s37, {act_base:#x}")

    def issue_stage(s):
        slot = s % R
        a(f"s_add_u32 s38, s35, {s*64*ROWB}")
        for q in range(NDMA):
            if q % 4 == 0:
                a(f"s_add_u32 m0, s36, {slot*STAGE + 1024*q}")
            a.vmem(f"buffer_load_dwordx4 v{V_DMA+q}, s[12:15], s38 offen offset:{1024*(q%4)} lds", f"W{s}")
        a(f"s_add_u32 s39, s37, {s*4096}")
        for j in range(4):
            a.vmem(f"buffer_load_dwordx4 {vr(V_RAW+16*s+4*j,4)}, v{V_ACT}, s[24:27], s39 offen offset:{1024*j}", f"A{4*s+j}")

    for s in range(R):
        issue_stage(s)
    a("v_lshrrev_b32 v2, 2, v0")
    a("v_lshlrev_b32 v2, 6, v2")
    a("v_and_b32 v3, 3, v0")
    a("v_lshl_add_u32 v2, v3, 3, v2")
    a(f"v_add_u32 v2, {MODL}, v2")
    a.wait(vm="mod")
    a(f"v_add_f32 v{V_ST}, 1.0, v{V_ST}")
    a(f"v_add_f32 v{V_ST+1}, 1.0, v{V_ST+1}")
    a.lds(f"ds_write_b64 v2, {vr(V_ST,2)}")
    a.lds(f"ds_write_b64 v2, {vr(V_ST+2,2)} offset:32")
    if kind == "gu":
        a.wait(vm="stat")
        b = V_ST + 16
        for j in range(1, 8):
            a(f"v_add_f32 v{b}, v{b}, v{b+2*j}")
            a(f"v_add_f32 v{b+1}, v{b+1}, v{b+2*j+1}")
        a(f"v_mov_b32 v{b+2}, v{b}")
        a(f"v_mov_b32 v{b+3}, v{b+1}")
        a(f"v_permlane32_swap_b32 v{b}, v{b+2}")
        a(f"v_permlane32_swap_b32 v{b+1}, v{b+3}")
        a(f"v_add_f32 v{b}, v{b}, v{b+2}")
        a(f"v_add_f32 v{b+1}, v{b+1}, v{b+3}")
        a(f"v_mul_f32 v{b}, {hexf(1.0/512)}, v{b}")
        a(f"v_mul_f32 v{b+1}, {hexf(1.0/512)}, v{b+1}")
        a(f"v_fma_f32 v{b+1}, -v{b}, v{b}, v{b+1}")
        a(f"v_max_f32 v{b+1}, 0, v{b+1}")
        a(f"v_add_f32 v{b+1}, {hexf(1e-5)}, v{b+1}")
        a(f"v_rsq_f32 v{V_RSTD}, v{b+1}")
        a(f"v_mul_f32 v{V_NMR}, v{b}, v{V_RSTD}")
        a(f"v_sub_f32 v{V_NMR}, 0, v{V_NMR}")

    def tr_reads(ks):
        s, kk = divmod(ks, 4)
        slot = s % R
        base = V_TR + slot // SLOTS_PER_BASE
        off0 = (slot % SLOTS_PER_BASE) * STAGE + kk * 16 * PITCH
        out = []
        for j in range(NT):
            for t2 in range(2):
                off = off0 + t2 * 4 * PITCH + (64 * j if kind == "qkv" else 32 * j)
                assert off < 65536
                d = V_WF + (ks % 2) * NT * 4 + 4 * j + 2 * t2
                out.append(lambda d=d, base=base, off=off, ks=ks: a.lds(f"ds_read_b64_tr_b16 {vr(d,2)}, v{base} offset:{off}", f"wf{ks}"))
        return out

    def st_reads(ks):
        d = V_ST + (ks % 2) * 16
        return [lambda j=j, d=d, ks=ks: a.lds(f"ds_read_b128 {vr(d+4*j,4)}, v{V_MOD} offset:{ks*128+16*j}", f"st{ks}") for j in range(4)]

    def transform(ks):
        S = V_ST + (ks % 2) * 16
        T = S + 8
        H = V_H + (ks % 2) * 4
        Rr = V_RAW + 4 * ks
        out = []
        for d in range(4):
            out.append(f"v_lshlrev_b32 v{V_T0}, 16, v{Rr+d}")
            out.append(f"v_and_b32 v{V_T1}, s31, v{Rr+d}")
            if kind == "gu":
                out.append(f"v_fma_f32 v{V_T0}, v{V_T0}, v{V_RSTD}, v{V_NMR}")
                out.append(f"v_fma_f32 v{V_T1}, v{V_T1}, v{V_RSTD}, v{V_NMR}")
            out.append(f"v_fmac_f32 v{T+2*d}, v{V_T0}, v{S+2*d}")
            out.append(f"v_fmac_f32 v{T+2*d+1}, v{V_T1}, v{S+2*d+1}")
            out.append(f"v_cvt_pk_bf16_f32 v{H+d}, v{T+2*d}, v{T+2*d+1}")
        return out

    def mfmas(ks):
        H = V_H + (ks % 2) * 4
        out = []
        for j in range(NT):
            Wf = V_WF + (ks % 2) * NT * 4 + 4 * j
            acc = ar(16 * j, 16)
            c = "0" if ks == 0 else acc
            if kind == "qkv" and j == 2:
                out.append(f"v_mfma_f32_32x32x16_bf16 {acc}, {vr(H,4)}, {vr(Wf,4)}, {c}")
            else:
                out.append(f"v_mfma_f32_32x32x16_bf16 {acc}, {vr(Wf,4)}, {vr(H,4)}, {c}")
        return out

    a.wait(vm="A0", lg="all")
    a("s_barrier")
    run_list(a, st_reads(0))
    run_list(a, st_reads(1))
    run_list(a, tr_reads(0))
    a.wait(lg="st0")
    run_list(a, transform(0))
    NK = 32
    for ks in range(NK):
        s, kk = divmod(ks, 4)
        last_of_stage = (kk == 3)
        nxt = ks + 1
        if nxt < NK:
            if last_of_stage:
                a.wait(vm=f"A{nxt}", lg="all")
                a("s_barrier")
                if s + R < 8:
                    issue_stage(s + R)
            else:
                a.wait(vm=f"A{nxt}", lg="all")
        else:
            a.wait(lg="all")
        fill = []
        if nxt < NK:
            fill += tr_reads(nxt)
            if ks + 2 < NK:
                fill += st_reads(ks + 2)
            fill += transform(nxt)
        run_list(a, interleave(mfmas(ks), fill))

    E = 128
    if kind == "qkv":
        a(f"v_lshlrev_b32 v2, 4, v1")
        a("s_lshl_b32 s38, s32, 17")
        a("s_lshl_b32 s29, s34, 10")
        a("s_add_u32 s38, s38, s29")
        a(f"s_add_u32 s39, s38, {WS_Q:#x}")
        a(f"s_add_u32 s40, s39, 0x10000")
        a(f"s_add_u32 s41, s38, {WS_K:#x}")
        a(f"s_add_u32 s42, s41, 0x10000")
        for r in range(16):
            a(f"v_accvgpr_read_b32 v{E+r}, a{r}")
        for r in range(16):
            a(f"v_mul_f32 v{E+r}, {hexf(0.25*LOG2E)}, v{E+r}")
        for d in range(8):
            a(f"v_cvt_pk_bf16_f32 v{E+16+d}, v{E+2*d}, v{E+2*d+1}")
        a(f"buffer_store_dwordx4 {vr(E+16,4)}, v2, s[24:27], s39 offen")
        a(f"buffer_store_dwordx4 {vr(E+20,4)}, v2, s[24:27], s40 offen")
        K0 = E + 32
        for r in range(16):
            a(f"v_accvgpr_read_b32 v{K0+r}, a{16+r}")
        for d in range(8):
            a(f"v_cvt_pk_bf16_f32 v{K0+16+d}, v{K0+2*d}, v{K0+2*d+1}")
        a(f"buffer_store_dwordx4 {vr(K0+16,4)}, v2, s[24:27], s41 offen")
        a(f"buffer_store_dwordx4 {vr(K0+20,4)}, v2, s[24:27], s42 offen")
        V0 = E + 64
        for r in range(16):
            a(f"v_accvgpr_read_b32 v{V0+r}, a{32+r}")
        for d in range(8):
            a(f"v_cvt_pk_bf16_f32 v{V0+16+d}, v{V0+2*d}, v{V0+2*d+1}")
        a("v_and_b32 v3, 15, v1")
        a("v_lshlrev_b32 v3, 4, v3")
        a(f"v_lshrrev_b32 v{V_T0}, 5, v1")
        a(f"v_lshl_add_u32 v3, v{V_T0}, 8, v3")
        a(f"v_bfe_u32 v{V_T0}, v1, 4, 1")
        a(f"v_lshl_add_u32 v3, v{V_T0}, 16, v3")
        a(f"s_add_u32 s43, s38, {WS_V:#x}")
        a(f"buffer_store_dwordx4 {vr(V0+16,4)}, v3, s[24:27], s43 offen")
        a(f"buffer_store_dwordx4 {vr(V0+20,4)}, v3, s[24:27], s43 offen offset:512")
        a(f"v_mul_f32 v4, v{K0}, v{K0}")
        a(f"v_mul_f32 v5, v{K0+8}, v{K0+8}")
        for r in range(1, 8):
            a(f"v_fmac_f32 v4, v{K0+r}, v{K0+r}")
            a(f"v_fmac_f32 v5, v{K0+8+r}, v{K0+8+r}")
        a("v_permlane32_swap_b32 v4, v5")
        a("v_add_f32 v4, v4, v5")
        for r in (8, 4, 2, 1):
            a(f"v_max_f32_dpp v4, v4, v4 row_ror:{r} row_mask:0xf bank_mask:0xf")
        a("v_mov_b32 v5, v4")
        a("v_permlane16_swap_b32 v4, v5")
        a("v_max_f32 v4, v4, v5")
        a(f"v_lshrrev_b32 v5, 5, v1")
        a("v_lshlrev_b32 v5, 8, v5")
        a("s_lshl_b32 s29, s32, 9")
        a("s_lshl_b32 s44, s34, 2")
        a("s_add_u32 s29, s29, s44")
        a(f"s_add_u32 s29, s29, {WS_KMAX:#x}")
        a("s_mov_b32 s44, 1")
        a("s_mov_b32 s45, 1")
        a("s_mov_b64 exec, s[44:45]")
        a("buffer_store_dword v4, v5, s[24:27], s29 offen")
    else:
        a(f"v_lshlrev_b32 v2, 4, v1")
        a("s_mul_i32 s38, s34, 112")
        a("s_mul_i32 s29, s32, 7")
        a("s_add_u32 s38, s38, s29")
        a("s_lshl_b32 s38, s38, 10")
        a(f"s_add_u32 s38, s38, {WS_ACT:#x}")
        a("s_add_u32 s39, s38, 4096")
        for j in range(NT):
            G = E + (j % 2) * 48
            U = G + 8
            Tm = G + 16
            Pk = G + 24
            for r in range(16):
                a(f"v_accvgpr_read_b32 v{G+r}, a{16*j+r}")
            for r in range(8):
                a(f"v_mul_f32 v{Tm+r}, {hexf(-LOG2E)}, v{G+r}")
            for r in range(8):
                a(f"v_exp_f32 v{Tm+r}, v{Tm+r}")
            for r in range(8):
                a(f"v_mul_f32 v{G+r}, v{G+r}, v{U+r}")
            for r in range(8):
                a(f"v_add_f32 v{Tm+r}, 1.0, v{Tm+r}")
            for r in range(8):
                a(f"v_rcp_f32 v{Tm+r}, v{Tm+r}")
            for r in range(8):
                a(f"v_mul_f32 v{G+r}, v{G+r}, v{Tm+r}")
            for d in range(4):
                a(f"v_cvt_pk_bf16_f32 v{Pk+d}, v{G+2*d}, v{G+2*d+1}")
            a(f"buffer_store_dwordx4 {vr(Pk,4)}, v2, s[24:27], s{38 + j//4} offen offset:{1024*(j%4)}")
    a.label(END)
    a("s_endpgm")
    return a, dict(vgpr=256 + 16 * NT, accum=256, lds=LDS, block=256, grid=256)


def k3():
    a = Asm()
    END = "K3_END"
    S_W = 30
    QF, CB, S0, S1, PP, OO, KF, VF = 4, 16, 32, 48, 64, 72, 88, 96
    V_KA, V_VA = 8, 9
    head(a, 256, END)
    a(f"s_load_dwordx2 s[10:11], s[0:1], {KA_WS}")
    wave_id(a, S_W, 1)
    a("v_and_b32 v1, 63, v0")
    a("s_and_b32 s3, s2, 7")
    a("s_lshr_b32 s28, s2, 3")
    a("s_lshl_b32 s32, s3, 2")
    a("s_lshr_b32 s29, s28, 3")
    a("s_add_u32 s32, s32, s29")
    a("s_and_b32 s33, s28, 7")
    a("s_lshl_b32 s34, s33, 3")
    a(f"s_add_u32 s34, s34, s{S_W}")
    a("v_lshlrev_b32 v2, 4, v1")
    a("s_lshl_b32 s35, s32, 16")
    a(f"s_lshl_b32 s36, s{S_W}, 10")
    a("s_add_u32 s37, s35, s36")
    a(f"s_add_u32 s37, s37, {WS_K:#x}")
    a("s_waitcnt lgkmcnt(0)")
    srd(a, 24, 10, WS_SIZE)
    a("s_lshl_b32 s29, s34, 10")
    a("s_add_u32 s29, s29, s35")
    a(f"s_add_u32 s29, s29, {WS_Q:#x}")
    a.vmem(f"buffer_load_dwordx4 {vr(QF,4)}, v2, s[24:27], s29 offen", "q")
    a("v_lshlrev_b32 v3, 2, v1")
    a("s_lshl_b32 s29, s32, 8")
    a(f"s_add_u32 s29, s29, {WS_KMAX:#x}")
    a.vmem(f"buffer_load_dword v10, v3, s[24:27], s29 offen", "q")
    for j in range(8):
        a(f"s_add_u32 s38, s37, {j*8192}")
        a(f"s_add_u32 m0, s36, {j*8192}")
        a.vmem(f"buffer_load_dwordx4 v2, s[24:27], s38 offen lds", f"c{j}")
        a(f"s_add_u32 s38, s37, {j*8192 + WS_V - WS_K}")
        a(f"s_add_u32 m0, s36, {j*8192 + 65536}")
        a.vmem(f"buffer_load_dwordx4 v2, s[24:27], s38 offen lds", f"c{j}")
    a("v_and_b32 v3, 27, v1")
    a("v_cmp_eq_u32 vcc, 16, v3")
    a("v_mov_b32 v11, 0x3f803f80")
    a("v_cndmask_b32 v11, 0, v11, vcc")
    for r in range(16):
        a(f"v_mov_b32 v{VF+r}, v11")
    a("s_mov_b32 s40, 0x0000ffff")
    a("s_mov_b32 s41, 0x0000ffff")
    a.wait(vm="q")
    a(f"v_dot2_f32_bf16 v12, v{QF}, v{QF}, 0")
    for d in range(1, 4):
        a(f"v_dot2_f32_bf16 v12, v{QF+d}, v{QF+d}, v12")
    for r in (8, 4, 2, 1):
        a(f"v_max_f32_dpp v10, v10, v10 row_ror:{r} row_mask:0xf bank_mask:0xf")
    a("v_mov_b32 v13, v10")
    a("v_permlane16_swap_b32 v10, v13")
    a("v_max_f32 v10, v10, v13")
    a("v_mov_b32 v13, v10")
    a("v_permlane32_swap_b32 v10, v13")
    a("v_max_f32 v10, v10, v13")
    a("s_nop 2")
    a("v_mov_b32 v13, v12")
    a("v_permlane32_swap_b32 v12, v13")
    a("v_add_f32 v12, v12, v13")
    a("v_mul_f32 v12, v12, v10")
    a("v_sqrt_f32 v12, v12")
    a(f"v_mul_f32 v12, {hexf(-1.02)}, v12")
    for r in range(16):
        a(f"v_mov_b32 v{CB+r}, v12")
    a("s_mov_b32 s42, 3")
    a("s_mov_b32 s43, 0")
    a.wait(vm="c0")
    a("s_barrier")
    a.label("K3_PASS")
    a(f"v_mov_b32 v{V_KA}, v2")
    a("v_and_b32 v3, 15, v1")
    a("v_lshlrev_b32 v3, 4, v3")
    a("v_lshrrev_b32 v13, 5, v1")
    a("v_lshl_add_u32 v3, v13, 8, v3")
    a(f"v_add_u32 v{V_VA}, 0x10000, v3")
    for r in range(16):
        a(f"v_mov_b32 v{OO+r}, 0")
    a(f"ds_read_b128 {vr(KF,4)}, v{V_KA}")
    a(f"ds_read_b128 {vr(KF+4,4)}, v{V_KA} offset:1024")
    a("s_mov_b64 exec, s[40:41]")
    a(f"ds_read_b128 {vr(VF,4)}, v{V_VA}")
    a(f"ds_read_b128 {vr(VF+4,4)}, v{V_VA} offset:512")
    a("s_mov_b64 exec, -1")
    a("s_mov_b32 s44, 0")
    a("s_waitcnt lgkmcnt(3)")
    a(f"v_mfma_f32_32x32x16_bf16 {vr(S0,16)}, {vr(KF,4)}, {vr(QF,4)}, {vr(CB,16)}")
    a("s_nop 7")
    a(".p2align 6")
    a.label("K3_LOOP")
    a("s_cmp_eq_u32 s44, s42")
    a("s_cbranch_scc1 K3_SYNC")
    a.label("K3_BACK")

    def phase(Sc, Sn, kc, kn, vc, vn, toff):
        a("s_waitcnt lgkmcnt(2)")
        a(f"v_mfma_f32_32x32x16_bf16 {vr(Sn,16)}, {vr(kn,4)}, {vr(QF,4)}, {vr(CB,16)}")
        for r in range(4):
            a(f"v_exp_f32 v{Sc+r}, v{Sc+r}")
        a(f"ds_read_b128 {vr(kc,4)}, v{V_KA} offset:{toff+2048}")
        for r in range(4, 8):
            a(f"v_exp_f32 v{Sc+r}, v{Sc+r}")
        for r in range(8, 10):
            a(f"v_exp_f32 v{Sc+r}, v{Sc+r}")
        for d in range(4):
            a(f"v_cvt_pk_bf16_f32 v{PP+d}, v{Sc+2*d}, v{Sc+2*d+1}")
        for r in range(10, 13):
            a(f"v_exp_f32 v{Sc+r}, v{Sc+r}")
        a("s_waitcnt lgkmcnt(1)")
        a(f"v_mfma_f32_32x32x16_bf16 {vr(OO,16)}, {vr(vc,4)}, {vr(PP,4)}, {vr(OO,16)}")
        for r in range(13, 16):
            a(f"v_exp_f32 v{Sc+r}, v{Sc+r}")
        a("s_mov_b64 exec, s[40:41]")
        a(f"ds_read_b128 {vr(vn,4)}, v{V_VA} offset:{toff+1024}")
        a(f"ds_read_b128 {vr(vn+4,4)}, v{V_VA} offset:{toff+1536}")
        a("s_mov_b64 exec, -1")
        for d in range(4, 8):
            a(f"v_cvt_pk_bf16_f32 v{PP+d}, v{Sc+2*d}, v{Sc+2*d+1}")
        a("s_nop 1")
        a(f"v_mfma_f32_32x32x16_bf16 {vr(OO,16)}, {vr(vc+4,4)}, {vr(PP+4,4)}, {vr(OO,16)}")

    phase(S0, S1, KF, KF + 4, VF, VF + 8, 0)
    phase(S1, S0, KF + 4, KF, VF + 8, VF, 1024)
    a(f"v_add_u32 v{V_KA}, 2048, v{V_KA}")
    a(f"v_add_u32 v{V_VA}, 2048, v{V_VA}")
    a("s_add_u32 s44, s44, 1")
    a("s_cmp_lt_u32 s44, 32")
    a("s_cbranch_scc1 K3_LOOP")
    a("s_waitcnt lgkmcnt(0)")
    a("s_nop 15")
    a(f"v_mov_b32 v13, {hexf(2.0**-60)}")
    a(f"v_cmp_nge_f32 vcc, v{OO+8}, v13")
    a("s_cmp_lg_u32 s43, 0")
    a("s_cbranch_scc1 K3_FIN")
    a("s_cbranch_vccnz K3_SLOW")
    a.label("K3_FIN")
    a(f"v_rcp_f32 v13, v{OO+8}")
    a("s_lshl_b32 s29, s34, 15")
    a("s_lshl_b32 s38, s32, 10")
    a("s_add_u32 s29, s29, s38")
    a(f"s_add_u32 s29, s29, {WS_O:#x}")
    for r in range(8):
        a(f"v_mul_f32 v{OO+r}, v{OO+r}, v13")
    for d in range(4):
        a(f"v_cvt_pk_bf16_f32 v{PP+d}, v{OO+2*d}, v{OO+2*d+1}")
    a(f"buffer_store_dwordx4 {vr(PP,4)}, v2, s[24:27], s29 offen")
    a.label(END)
    a("s_endpgm")
    a.label("K3_SYNC")
    a("s_waitcnt vmcnt(0)")
    a("s_barrier")
    a("s_branch K3_BACK")
    a.label("K3_SLOW")
    a("s_mov_b32 s43, 1")
    a("s_mov_b32 s42, -1")
    a(f"v_mov_b32 v{V_KA}, v2")
    a("v_mov_b32 v12, 0xff800000")
    a("s_mov_b32 s44, 0")
    a.label("K3_MAXL")
    a(f"ds_read_b128 {vr(KF,4)}, v{V_KA}")
    a("s_waitcnt lgkmcnt(0)")
    a(f"v_mfma_f32_32x32x16_bf16 {vr(S0,16)}, {vr(KF,4)}, {vr(QF,4)}, 0")
    a("s_nop 15")
    for r in range(8):
        a(f"v_max3_f32 v12, v{S0+2*r}, v{S0+2*r+1}, v12")
    a(f"v_add_u32 v{V_KA}, 1024, v{V_KA}")
    a("s_add_u32 s44, s44, 1")
    a("s_cmp_lt_u32 s44, 64")
    a("s_cbranch_scc1 K3_MAXL")
    a("v_mov_b32 v13, v12")
    a("v_permlane32_swap_b32 v12, v13")
    a("v_max_f32 v12, v12, v13")
    a("v_sub_f32 v12, 0, v12")
    for r in range(16):
        a(f"v_mov_b32 v{CB+r}, v12")
    a("s_branch K3_PASS")
    return a, dict(vgpr=112, accum=112, lds=131072 + 4096, block=512, grid=256)


def t2(kind):
    a = Asm()
    P = "K4" if kind == "wo" else "K6"
    END = P + "_END"
    KB = 32 if kind == "wo" else 112
    NS = KB // 4
    D = min(NS, 14)
    REG = D * 2048
    LDS = 4 * REG
    S_W = 30
    V_DMA = 4
    V_TR = 6
    V_ACT = 8
    V_T0 = 10
    V_WF = 12
    V_G = 28
    V_X = 44
    V_RAW = 64
    head(a, 256, END)
    a(f"s_load_dwordx2 s[4:5], s[0:1], {KA_WO if kind=='wo' else KA_WD}")
    a(f"s_load_dwordx2 s[6:7], s[0:1], {KA_X if kind=='wo' else KA_OUT}")
    a(f"s_load_dwordx2 s[10:11], s[0:1], {KA_WS}")
    wave_id(a, S_W, 1)
    a("v_and_b32 v1, 63, v0")
    a("s_mov_b32 s31, 0xffff0000")
    a("s_and_b32 s3, s2, 7")
    a("s_lshr_b32 s28, s2, 3")
    a("s_lshl_b32 s32, s3, 2")
    a("s_lshr_b32 s29, s28, 3")
    a("s_add_u32 s32, s32, s29")
    a("s_and_b32 s33, s28, 7")
    a("v_lshrrev_b32 v2, 3, v1")
    a("v_and_b32 v3, 7, v1")
    a(f"v_bfe_u32 v{V_T0}, v1, 4, 1")
    a(f"v_lshlrev_b32 v{V_T0}, 2, v{V_T0}")
    a(f"v_xor_b32 v3, v3, v{V_T0}")
    a("v_lshlrev_b32 v2, 10, v2")
    a(f"v_lshl_add_u32 v{V_DMA}, v3, 4, v2")
    a(f"v_add_u32 v{V_DMA+1}, {8192-1024}, v{V_DMA}")
    a(f"s_mul_i32 s35, s{S_W}, {NS*16*1024}")
    a("s_lshl_b32 s29, s33, 7")
    a("s_add_u32 s35, s35, s29")
    a(f"s_mul_i32 s36, s{S_W}, {REG}")
    a("v_bfe_u32 v2, v1, 2, 2")
    a("v_lshrrev_b32 v3, 5, v1")
    a("v_lshl_add_u32 v2, v3, 3, v2")
    a("v_lshlrev_b32 v2, 7, v2")
    a("v_and_b32 v3, 1, v1")
    a("v_lshl_add_u32 v2, v3, 4, v2")
    a("v_bfe_u32 v3, v1, 1, 1")
    a("v_lshl_add_u32 v2, v3, 3, v2")
    a("v_bfe_u32 v3, v1, 4, 1")
    a("v_lshl_add_u32 v2, v3, 5, v2")
    a("v_bfe_u32 v3, v1, 3, 1")
    a("v_lshl_add_u32 v2, v3, 6, v2")
    a(f"v_add_u32 v{V_TR}, s36, v2")
    a("v_xor_b32 v2, 64, v2")
    a(f"v_add_u32 v{V_TR+1}, s36, v2")
    a(f"v_lshlrev_b32 v{V_ACT}, 4, v1")
    a(f"v_add_u32 v{V_ACT+1}, {KB*1024}, v{V_ACT}")
    act_base = WS_O if kind == "wo" else WS_ACT
    a(f"s_mul_i32 s37, s32, {2*KB*1024}")
    a(f"s_mul_i32 s29, s{S_W}, {NS*1024}")
    a("s_add_u32 s37, s37, s29")
    a(f"s_add_u32 s37, s37, {act_base:#x}")
    a(f"s_and_b32 s29, s{S_W}, 1")
    a("s_lshl_b32 s40, s32, 1")
    a("s_add_u32 s40, s40, s29")
    a(f"s_lshr_b32 s29, s{S_W}, 1")
    a("s_lshl_b32 s41, s33, 1")
    a("s_add_u32 s41, s41, s29")
    a("s_waitcnt lgkmcnt(0)")
    srd(a, 12, 4, KB * 16 * 512 * 2)
    srd(a, 16, 6, 2048 * 512 * 2)
    srd(a, 24, 10, WS_SIZE)

    def issue(i):
        slot = i % D
        a(f"s_add_u32 s38, s35, {i*16*1024}")
        a(f"s_add_u32 m0, s36, {slot*2048}")
        a.vmem(f"buffer_load_dwordx4 v{V_DMA}, s[12:15], s38 offen lds", f"W{i}")
        a.vmem(f"buffer_load_dwordx4 v{V_DMA+1}, s[12:15], s38 offen offset:1024 lds", f"W{i}")
        if i % 4 == 0 or True:
            a(f"s_add_u32 s39, s37, {i*1024}")
        a.vmem(f"buffer_load_dwordx4 {vr(V_RAW+8*slot,4)}, v{V_ACT}, s[24:27], s39 offen", f"A{i}")
        a.vmem(f"buffer_load_dwordx4 {vr(V_RAW+8*slot+4,4)}, v{V_ACT+1}, s[24:27], s39 offen", f"A{i}")

    for i in range(D):
        issue(i)
    a("v_lshrrev_b32 v3, 5, v1")
    a("v_lshlrev_b32 v2, 5, v3")
    goff = WS_MOD + (2 * 2048 if kind == "wo" else 5 * 2048)
    a("s_lshl_b32 s29, s41, 7")
    a(f"s_add_u32 s29, s29, {goff}")
    for u in range(2):
        for q in range(2):
            a.vmem(f"buffer_load_dwordx4 {vr(V_G+8*u+4*q,4)}, v2, s[24:27], s29 offen offset:{64*u+16*q}", "ep")
    a(f"v_and_b32 v{V_T0}, 31, v1")
    a(f"v_lshlrev_b32 v{V_T0}, 10, v{V_T0}")
    a(f"v_lshl_add_u32 v{V_T0}, v3, 4, v{V_T0}")
    a("s_lshl_b32 s42, s40, 15")
    a("s_lshl_b32 s29, s41, 6")
    a("s_add_u32 s42, s42, s29")
    a("s_lshl_b32 s43, s40, 15")
    a("s_lshl_b32 s29, s41, 11")
    a("s_add_u32 s43, s43, s29")
    a(f"s_add_u32 s43, s43, {WS_X1:#x}")
    if kind == "wo":
        for u in range(2):
            a.vmem(f"buffer_load_dwordx4 {vr(V_X+4*u,4)}, v{V_T0}, s[16:19], s42 offen offset:{32*u}", "ep")
    else:
        for u in range(2):
            a.vmem(f"buffer_load_dwordx4 {vr(V_X+4*u,4)}, v{V_ACT}, s[24:27], s43 offen offset:{1024*u}", "ep")

    def tr_reads(i):
        slot = i % D
        out = []
        for nt in range(2):
            for t2 in range(2):
                d = V_WF + (i % 2) * 8 + 4 * nt + 2 * t2
                off = slot * 2048 + t2 * 512
                out.append(lambda d=d, nt=nt, off=off, i=i: a.lds(f"ds_read_b64_tr_b16 {vr(d,2)}, v{V_TR+nt} offset:{off}", f"wf{i}"))
        return out

    a.wait(vm="W0")
    run_list(a, tr_reads(0))
    for i in range(NS):
        slot = i % D
        if i + 1 < NS:
            a.wait(vm=f"W{i+1}", lg="all")
        else:
            a.wait(vm=f"A{i}", lg="all")
        m = []
        for nt in range(2):
            for rbi in range(2):
                q = rbi + 2 * nt
                acc = ar(16 * q, 16)
                c = "0" if i == 0 else acc
                m.append(f"v_mfma_f32_32x32x16_bf16 {acc}, {vr(V_WF+(i%2)*8+4*nt,4)}, {vr(V_RAW+8*slot+4*rbi,4)}, {c}")
        fill = tr_reads(i + 1) if i + 1 < NS else []
        run_list(a, interleave(m, fill))
        if i + D < NS:
            issue(i + D)
    a("v_lshlrev_b32 v2, 4, v1")
    a("v_add_u32 v3, s36, v2")
    for q in range(4):
        for j in range(4):
            a(f"ds_write_b128 v3, {ar(16*q+4*j,4)} offset:{q*4096+j*1024}")
    a(f"s_lshl_b32 s29, s{S_W}, 12")
    a("v_add_u32 v3, s29, v2")
    a("s_waitcnt lgkmcnt(0)")
    a("s_barrier")
    Rr = 64
    a(f"v_add_u32 v2, {2*REG}, v3")
    for sw in range(4):
        for j in range(4):
            a(f"ds_read_b128 {vr(Rr+16*sw+4*j,4)}, v{3 if sw<2 else 2} offset:{(sw%2)*REG+j*1024}")
    a("s_waitcnt vmcnt(0) lgkmcnt(8)")
    for r in range(16):
        a(f"v_add_f32 v{Rr+r}, v{Rr+r}, v{Rr+16+r}")
    a("s_waitcnt lgkmcnt(0)")
    for r in range(16):
        a(f"v_add_f32 v{Rr+32+r}, v{Rr+32+r}, v{Rr+48+r}")
    for r in range(16):
        a(f"v_add_f32 v{Rr+r}, v{Rr+r}, v{Rr+32+r}")
    XR = Rr + 16
    for d in range(8):
        a(f"v_lshlrev_b32 v{XR+2*d}, 16, v{V_X+d}")
        a(f"v_and_b32 v{XR+2*d+1}, s31, v{V_X+d}")
    for r in range(16):
        a(f"v_fmac_f32 v{XR+r}, v{Rr+r}, v{V_G+r}")
    PK = Rr + 32
    for d in range(8):
        a(f"v_cvt_pk_bf16_f32 v{PK+d}, v{XR+2*d}, v{XR+2*d+1}")
    if kind == "wo":
        for u in range(2):
            a(f"buffer_store_dwordx4 {vr(PK+4*u,4)}, v{V_ACT}, s[24:27], s43 offen offset:{1024*u}")
        a(f"v_add_f32 v4, v{XR}, v{XR+1}")
        a(f"v_mul_f32 v5, v{XR}, v{XR}")
        a(f"v_fmac_f32 v5, v{XR+1}, v{XR+1}")
        for r in range(2, 16):
            a(f"v_add_f32 v4, v4, v{XR+r}")
            a(f"v_fmac_f32 v5, v{XR+r}, v{XR+r}")
        a("v_mov_b32 v6, v4")
        a("v_mov_b32 v7, v5")
        a("v_permlane32_swap_b32 v4, v6")
        a("v_permlane32_swap_b32 v5, v7")
        a("v_add_f32 v4, v4, v6")
        a("v_add_f32 v5, v5, v7")
        a("v_lshlrev_b32 v6, 7, v1")
        a("s_lshl_b32 s29, s40, 12")
        a("s_lshl_b32 s44, s41, 3")
        a("s_add_u32 s29, s29, s44")
        a(f"s_add_u32 s29, s29, {WS_STAT:#x}")
        a("s_mov_b32 s44, -1")
        a("s_mov_b32 s45, 0")
        a("s_mov_b64 exec, s[44:45]")
        a("buffer_store_dwordx2 v[4:5], v6, s[24:27], s29 offen")
    else:
        for u in range(2):
            a(f"buffer_store_dwordx4 {vr(PK+4*u,4)}, v{V_T0}, s[16:19], s42 offen offset:{32*u}")
    a.label(END)
    a("s_endpgm")
    nv = max(V_RAW + 8 * D, 128)
    nv = (nv + 3) // 4 * 4
    return a, dict(vgpr=nv + 64, accum=nv, lds=LDS, block=256, grid=256)


HEADER = open(os.path.join(os.path.dirname(os.path.abspath(__file__)), "..", "cdna_kernels", NAME + ".s.ref")).read().split("; Override")[0]


def build(kernels):
    out = [HEADER.rstrip("\n")]
    for name, (a, info) in kernels:
        out.append(f"; @launch kernel={name} grid=({info['grid']},1,1) block=({info['block']},1,1) lds={info['lds']}")
    out.append('.amdgcn_target "amdgcn-amd-amdhsa--gfx950"')
    out.append(".text")
    seen = set()
    for name, (a, info) in kernels:
        if name in seen:
            continue
        seen.add(name)
        a.finalize()
        out.append(f".globl {name}\n.p2align 8\n.type {name},@function\n{name}:")
        out.append(a.text())
    out.append('.section .rodata,"a"')
    seen = set()
    for name, (a, info) in kernels:
        if name in seen:
            continue
        seen.add(name)
        out.append(f""".p2align 6
.amdhsa_kernel {name}
  .amdhsa_next_free_vgpr {info['vgpr']}
  .amdhsa_next_free_sgpr 64
  .amdhsa_accum_offset {info['accum']}
  .amdhsa_group_segment_fixed_size 0
  .amdhsa_kernarg_size 96
  .amdhsa_user_sgpr_count 2
  .amdhsa_user_sgpr_kernarg_segment_ptr 1
  .amdhsa_system_sgpr_workgroup_id_x 1
.end_amdhsa_kernel""")
    return "\n".join(out) + "\n"


def all_kernels():
    return [
        ("k1_prep_kernel", k1()),
        ("k2_qkv_kernel", t1("qkv")),
        ("k3_attn_kernel", k3()),
        ("k4_wo_kernel", t2("wo")),
        ("k5_gu_kernel", t1("gu")),
        ("k6_down_kernel", t2("down")),
    ]


if __name__ == "__main__":
    txt = build(all_kernels())
    path = sys.argv[1] if len(sys.argv) > 1 else os.path.join(os.path.dirname(os.path.abspath(__file__)), "..", "cdna_kernels", NAME + ".s")
    open(path, "w").write(txt)
    print("wrote", path, len(txt), "bytes")
```
